```python
import torch

def _softmax(x, axis=-1):
    return torch.softmax(x, dim=axis)
def _gelu(x):
    return torch.nn.functional.gelu(x, approximate="tanh")
def _silu(x):
    return torch.nn.functional.silu(x)
def _sigmoid(x):
    return torch.sigmoid(x)
def _layernorm(x, axis=-1, eps=1e-5):
    m = x.mean(dim=axis, keepdim=True)
    v = x.var(dim=axis, keepdim=True, unbiased=False)
    return (x - m) / torch.sqrt(v + eps)
def _scatter_add(tgt, idx, src, axis=0):
    return tgt.clone().index_add_(axis, idx, src)
def _segment_sum(src, seg, n):
    out = torch.zeros((n,) + src.shape[1:], dtype=src.dtype)
    return out.index_add_(0, seg, src)
def _pad(x, pw):
    flat = tuple(v for pair in reversed(pw) for v in pair)
    return torch.nn.functional.pad(x, flat)

kernel_name = 'concat_heads__gqa_block_cached__gqa_block_cached__near_ridge'

def setup_inputs():

    _w = (lambda a: (lambda t: t.to(torch.bfloat16) if t.is_floating_point() else t)(torch.as_tensor(a)))
    def _A_setup():
        B, Sq, D = 8, 96, 640
        Hq, Hkv, Sk, Dh = 32, 32, 512, 128
        assert Hq % Hkv == 0, (Hq, Hkv)
        return {
            "x": _w((lambda *s: torch.randn(*s, dtype=torch.bfloat16) * 0.8)(B, Sq, D)),
            "k_cache": _w((lambda *s: torch.randn(*s, dtype=torch.bfloat16) * 0.8)(B, Hkv, Sk, Dh)),
            "v_cache": _w((lambda *s: torch.randn(*s, dtype=torch.bfloat16) * 0.05)(B, Hkv, Sk, Dh)),
            "wq": _w((lambda *s: torch.randn(*s, dtype=torch.bfloat16) * 0.8)(D, Hq * Dh) * (D ** -0.5)),
            "wo": _w((lambda *s: torch.randn(*s, dtype=torch.bfloat16) * 0.05)(Hq * Dh, D) * ((Hq * Dh) ** -0.5)),
        }
    _A_in = _A_setup()

    def _B_setup():
        B, Sq, D = 8, 96, 640
        Hq, Hkv, Sk, Dh = 32, 32, 512, 128
        assert Hq % Hkv == 0, (Hq, Hkv)
        return {
            "x": _w((lambda *s: torch.randn(*s, dtype=torch.bfloat16) * 0.8)(B, Sq, D)),
            "k_cache": _w((lambda *s: torch.randn(*s, dtype=torch.bfloat16) * 0.8)(B, Hkv, Sk, Dh)),
            "v_cache": _w((lambda *s: torch.randn(*s, dtype=torch.bfloat16) * 0.05)(B, Hkv, Sk, Dh)),
            "wq": _w((lambda *s: torch.randn(*s, dtype=torch.bfloat16) * 0.8)(D, Hq * Dh) * (D ** -0.5)),
            "wo": _w((lambda *s: torch.randn(*s, dtype=torch.bfloat16) * 0.05)(Hq * Dh, D) * ((Hq * Dh) ** -0.5)),
        }
    _B_in = _B_setup()

    return {
        "A_x": _A_in["x"],
        "A_k_cache": _A_in["k_cache"],
        "A_v_cache": _A_in["v_cache"],
        "A_wq": _A_in["wq"],
        "A_wo": _A_in["wo"],
        "B_x": _B_in["x"],
        "B_k_cache": _B_in["k_cache"],
        "B_v_cache": _B_in["v_cache"],
        "B_wq": _B_in["wq"],
        "B_wo": _B_in["wo"],
    }

def reference(A_x, A_k_cache, A_v_cache, A_wq, A_wo, B_x, B_k_cache, B_v_cache, B_wq, B_wo):
    def _A_ref(x, k_cache, v_cache, wq, wo):
        B, Sq, D = x.shape
        Hq, Dh = 32, 128
        Hkv = k_cache.shape[1]
        rep = Hq // Hkv
        q = (lambda x, *d: x.permute(*d))((x @ wq).reshape(B, Sq, Hq, Dh), 0, 2, 1, 3)
        k = (lambda x, n, axis: torch.repeat_interleave(x, n, dim=axis))(k_cache, rep, axis=1)
        v = (lambda x, n, axis: torch.repeat_interleave(x, n, dim=axis))(v_cache, rep, axis=1)
        scores = torch.einsum("bhqd,bhkd->bhqk", q, k) * (Dh ** -0.5)
        p = _softmax(scores, axis=-1)
        o = torch.einsum("bhqk,bhkd->bhqd", p, v)
        return (lambda x, *d: x.permute(*d))(o, 0, 2, 1, 3).reshape(B, Sq, Hq * Dh) @ wo

    def _B_ref(x, k_cache, v_cache, wq, wo):
        B, Sq, D = x.shape
        Hq, Dh = 32, 128
        Hkv = k_cache.shape[1]
        rep = Hq // Hkv
        q = (lambda x, *d: x.permute(*d))((x @ wq).reshape(B, Sq, Hq, Dh), 0, 2, 1, 3)
        k = (lambda x, n, axis: torch.repeat_interleave(x, n, dim=axis))(k_cache, rep, axis=1)
        v = (lambda x, n, axis: torch.repeat_interleave(x, n, dim=axis))(v_cache, rep, axis=1)
        scores = torch.einsum("bhqd,bhkd->bhqk", q, k) * (Dh ** -0.5)
        p = _softmax(scores, axis=-1)
        o = torch.einsum("bhqk,bhkd->bhqd", p, v)
        return (lambda x, *d: x.permute(*d))(o, 0, 2, 1, 3).reshape(B, Sq, Hq * Dh) @ wo

    a = _A_ref(A_x, A_k_cache, A_v_cache, A_wq, A_wo)
    b = _B_ref(B_x, B_k_cache, B_v_cache, B_wq, B_wo)
    return torch.concatenate([a, b], axis=-1)
```

```python
class Em:
    def __init__(self):
        self.L = []
        self.fifo = []
        self.nlab = 0

    def __call__(self, s):
        self.L.append("  " + s)

    def raw(self, s):
        self.L.append(s)

    def label(self, s):
        self.L.append(s + ":")

    def c(self, s):
        self.L.append("  ; " + s)

    def vm(self, s, tag):
        self(s)
        self.fifo.append(tag)

    def vmcnt_for(self, tags):
        if isinstance(tags, str):
            tags = [tags]
        last = -1
        for i, t in enumerate(self.fifo):
            if t in tags:
                last = i
        if last < 0:
            return None
        n = len(self.fifo) - 1 - last
        return n

    def wait(self, tags=None, lgkm=None):
        parts = []
        if tags is not None:
            n = self.vmcnt_for(tags)
            if n is not None:
                assert n <= 63, n
                parts.append(f"vmcnt({n})")
                self.fifo = self.fifo[len(self.fifo) - n:] if n else []
        if lgkm is not None:
            parts.append(f"lgkmcnt({lgkm})")
        if parts:
            self("s_waitcnt " + " ".join(parts))

    def text(self):
        return "\n".join(self.L) + "\n"


def weave(em, main, fillers, start=0, every=1):
    fi = 0
    for i, m in enumerate(main):
        emit1(em, m)
        if i >= start and (i - start) % every == 0 and fi < len(fillers):
            for f in fillers[fi]:
                emit1(em, f)
            fi += 1
    while fi < len(fillers):
        for f in fillers[fi]:
            emit1(em, f)
        fi += 1


def emit1(em, x):
    if callable(x):
        x()
    else:
        em(x)
```

```python
import sys, math
sys.path.insert(0, "gen")
from emit import Em, weave, emit1

NAME = "concat_heads__gqa_block_cached__gqa_block_cached__near_ridge"
O_BRANCH = 768 * 4096 * 2
O_BYTES = 2 * O_BRANCH
DBG_OFF = 16 << 20
CEXP = math.log2(math.e) / math.sqrt(128.0)


def f32hex(x):
    import struct
    return "0x%08x" % struct.unpack("<I", struct.pack("<f", x))[0]


class Opt:
    stamps = False
    kv_nt = True
    o_sc1 = False


def srd(e, base, nbytes):
    e(f"s_and_b32 s{base+1}, s{base+1}, 0xffff")
    e(f"s_mov_b32 s{base+2}, {nbytes}")
    e(f"s_mov_b32 s{base+3}, 0x00020000")


def mf16(d, a, b, c):
    return f"v_mfma_f32_16x16x32_bf16 {d}, {a}, {b}, {c}"


def vr(i, n):
    return f"v[{i}:{i+n-1}]"


def ar(i, n):
    return f"a[{i}:{i+n-1}]"


class Stamper:
    def __init__(self, e, on, base=60):
        self.e, self.on, self.base, self.n = e, on, base, 0
        self.names = []

    def __call__(self, name):
        if not self.on:
            return
        b = self.base + 2 * self.n
        assert b + 1 < 100
        self.e(f"s_memrealtime s[{b}:{b+1}]")
        self.e("s_waitcnt lgkmcnt(0)")
        self.n += 1
        self.names.append(name)

    def dump(self, srd_base, s_wave, koff):
        if not self.on:
            return
        e = self.e
        e("s_lshl_b32 s3, s2, 2")
        e(f"s_add_u32 s3, s3, s{s_wave}")
        e("s_lshl_b32 s3, s3, 7")
        e(f"s_add_u32 s3, s3, {DBG_OFF + koff}")
        e("v_mov_b32 v3, 0")
        for i in range(self.n):
            e(f"v_mov_b32 v2, s{self.base + 2*i}")
            e(f"buffer_store_dword v2, v3, s[{srd_base}:{srd_base+3}], s3 offen offset:{4*i}")
        e("s_waitcnt vmcnt(0)")


def gen_k1(e, opt):
    sX, sW, sK, sV, sO = 8, 12, 16, 20, 24
    S_W, S_QH, S_KH, S_BR, S_B, S_H0 = 28, 29, 30, 31, 32, 33
    S_XOFF, S_WOFF, S_KV, S_T, S_M0KV, S_M0X = 34, 35, 36, 37, 38, 39
    S_OST = 40
    S_T2 = 43
    vKV = [4, 5]
    vW = [6, 7, 8, 9]
    vX = [10, 11, 12]
    vKa = [13, 14, 15, 16]
    vTa = list(range(17, 25))
    vXa = [25, 26]
    vOst, vCw, vCr, vML = 27, 28, 29, 30
    vM = [32, 33, 34]
    vT = [35, 36, 37]
    vMC = [38, 40, 42]
    vCC = 44
    vL = [46, 48, 50]
    vE = 52
    vF = [38, 40, 42]
    SB = 64
    OB = 160
    XB = 131072
    QIMG = 114688
    MLB = 155648
    nt = " nt" if opt.kv_nt else ""
    st = Stamper(e, opt.stamps)

    e.label("k1_kernel")
    e("s_cmp_ge_u32 s2, 256")
    e("s_cbranch_scc1 L_k1_end")
    st("start")
    e("s_and_b32 s3, s2, 7")
    e(f"s_lshr_b32 s{S_BR}, s3, 2")
    e(f"s_mul_i32 s4, s{S_BR}, 40")
    e("s_add_u32 s4, s0, s4")
    e("s_addc_u32 s5, s1, 0")
    e(f"s_load_dwordx2 s[{sX}:{sX+1}], s[4:5], 0")
    e(f"s_load_dwordx2 s[{sW}:{sW+1}], s[4:5], 24")
    e(f"s_load_dwordx2 s[{sK}:{sK+1}], s[4:5], 8")
    e(f"s_load_dwordx2 s[{sV}:{sV+1}], s[4:5], 16")
    e(f"s_load_dwordx2 s[{sO}:{sO+1}], s[0:1], 96")
    e("v_lshrrev_b32 v2, 6, v0")
    e("v_and_b32 v1, 63, v0")
    e(f"v_readfirstlane_b32 s{S_W}, v2")
    e("s_and_b32 s3, s3, 3")
    e("s_lshr_b32 s6, s2, 3")
    e("s_and_b32 s7, s6, 3")
    e(f"s_lshr_b32 s{S_B}, s6, 2")
    e("s_lshl_b32 s3, s3, 3")
    e("s_lshl_b32 s7, s7, 1")
    e(f"s_add_u32 s{S_H0}, s3, s7")
    e(f"s_and_b32 s{S_QH}, s{S_W}, 1")
    e(f"s_lshr_b32 s{S_KH}, s{S_W}, 1")
    e(f"s_mul_i32 s{S_XOFF}, s{S_B}, 122880")
    e(f"s_lshl_b32 s{S_WOFF}, s{S_H0}, 8")
    e(f"s_lshl_b32 s3, s{S_B}, 5")
    e(f"s_add_u32 s3, s3, s{S_H0}")
    e(f"s_lshl_b32 s{S_KV}, s3, 17")
    e(f"s_lshl_b32 s{S_M0KV}, s{S_W}, 12")
    e(f"s_mul_i32 s{S_M0X}, s{S_W}, 3072")
    e(f"s_add_u32 s{S_M0X}, s{S_M0X}, {XB}")
    e("v_and_b32 v2, 15, v1")
    e("v_lshrrev_b32 v3, 4, v1")
    e("v_lshrrev_b32 v60, 3, v1")
    e("v_and_b32 v61, 6, v60")
    e("v_and_b32 v62, 7, v1")
    e("v_xor_b32 v61, v61, v62")
    e("v_lshlrev_b32 v61, 4, v61")
    e("v_mul_u32_u24 v60, 1280, v60")
    e("v_add_u32 v60, v60, v61")
    e(f"s_mul_i32 s3, s{S_W}, 30720")
    e(f"v_add_u32 v{vX[0]}, s3, v60")
    e(f"v_add_u32 v{vX[1]}, {10240-1024}, v{vX[0]}")
    e(f"v_add_u32 v{vX[2]}, {2*(10240-1024)}, v{vX[0]}")
    e("v_lshrrev_b32 v62, 5, v1")
    e("v_and_b32 v60, 31, v1")
    e("v_lshlrev_b32 v61, 1, v62")
    e("v_xor_b32 v60, v60, v61")
    e(f"s_lshl_b32 s3, s{S_QH}, 3")
    e("v_xor_b32 v60, s3, v60")
    e("v_lshlrev_b32 v60, 4, v60")
    e("v_lshlrev_b32 v61, 13, v62")
    e(f"s_lshl_b32 s3, s{S_W}, 16")
    e("v_add3_u32 v61, v61, s3, v60")
    e(f"v_mov_b32 v{vW[0]}, v61")
    e("v_xor_b32 v60, 64, v61")
    e(f"v_add_u32 v{vW[1]}, {16384-1024}, v60")
    e(f"v_add_u32 v{vW[2]}, {2*(16384-1024)}, v61")
    e(f"v_add_u32 v{vW[3]}, {3*(16384-1024)}, v60")
    e("v_lshlrev_b32 v60, 1, v3")
    e("v_xor_b32 v60, v60, v2")
    e("v_lshlrev_b32 v60, 4, v60")
    e("v_lshl_add_u32 v60, v3, 8, v60")
    e(f"v_add_u32 v{vKV[0]}, s{S_M0KV}, v60")
    e(f"v_xor_b32 v{vKV[1]}, 128, v{vKV[0]}")
    e("s_waitcnt lgkmcnt(0)")
    srd(e, sX, 983040)
    srd(e, sW, 5242880)
    srd(e, sK, 33554432)
    srd(e, sV, 33554432)
    srd(e, sO, (DBG_OFF + (1 << 20)) if opt.stamps else O_BYTES)

    def dma_w(s):
        g = []
        pos = 4 + (s & 3)
        pre = [f"s_add_u32 m0, s{S_M0KV}, {pos*16384}", f"s_add_u32 s{S_T}, s{S_WOFF}, {s*262144}"]
        for j in range(4):
            ins = f"buffer_load_dwordx4 v{vW[j]}, s[{sW}:{sW+3}], s{S_T} offen offset:{j*1024} lds"
            g.append((pre if j == 0 else []) + [lambda ins=ins, s=s: e.vm(ins, f"w{s}")])
        return g

    def dma_x(jx):
        g = []
        pre = [f"s_add_u32 m0, s{S_M0X}, {(jx&1)*12288}", f"s_add_u32 s{S_T2}, s{S_XOFF}, {jx*128}"]
        for j in range(3):
            ins = f"buffer_load_dwordx4 v{vX[j]}, s[{sX}:{sX+3}], s{S_T2} offen offset:{j*1024} lds"
            g.append((pre if j == 0 else []) + [lambda ins=ins, jx=jx: e.vm(ins, f"x{jx}")])
        return g

    def dma_kv(n, which=(0, 1, 2, 3)):
        g = []
        u, ph, sg = n >> 4, (n >> 3) & 1, n & 7
        R = sV if ph else sK
        pre = [f"s_add_u32 m0, s{S_M0KV}, {(n&7)*16384}", f"s_add_u32 s{S_T}, s{S_KV}, {u*131072 + sg*16384}"]
        for idx, j in enumerate(which):
            ins = f"buffer_load_dwordx4 v{vKV[j&1]}, s[{R}:{R+3}], s{S_T} offen offset:{j*1024}{nt} lds"
            g.append((pre if idx == 0 else []) + [lambda ins=ins, n=n: e.vm(ins, f"kv{n}")])
        return g

    def flat(groups):
        for g in groups:
            for f in g:
                emit1(e, f)

    flat(dma_x(0)); flat(dma_w(0)); flat(dma_w(1)); flat(dma_x(1)); flat(dma_w(2)); flat(dma_w(3))
    e("v_lshrrev_b32 v60, 2, v2")
    e("v_and_b32 v61, 3, v2")
    e("v_and_b32 v62, 1, v3")
    e("v_lshl_add_u32 v62, v62, 2, v60")
    e("v_lshl_add_u32 v63, v3, 3, v60")
    e("v_lshlrev_b32 v63, 9, v63")
    e("v_lshl_add_u32 v63, v62, 5, v63")
    e("v_lshl_add_u32 v63, v61, 3, v63")
    e(f"s_lshl_b32 s3, s{S_KH}, 8")
    e("s_add_u32 s3, s3, 65536")
    e(f"v_add_u32 v{vTa[0]}, s3, v63")
    for T in range(1, 8):
        e(f"v_xor_b32 v{vTa[T]}, {T<<5}, v{vTa[0]}")
    e("v_and_b32 v63, 6, v2")
    e("v_xor_b32 v63, v63, v3")
    e("v_lshlrev_b32 v63, 4, v63")
    e("v_lshl_add_u32 v63, v2, 7, v63")
    e(f"s_mul_i32 s3, s{S_QH}, {48*128}")
    e(f"s_add_u32 s3, s3, {XB}")
    e(f"v_add_u32 v{vXa[0]}, s3, v63")
    e(f"v_xor_b32 v{vXa[1]}, 64, v{vXa[0]}")
    e("v_and_b32 v63, 7, v2")
    e("v_lshlrev_b32 v63, 1, v63")
    e("v_xor_b32 v63, v63, v3")
    e("v_lshlrev_b32 v63, 4, v63")
    e("v_lshl_add_u32 v63, v2, 8, v63")
    e(f"s_lshl_b32 s3, s{S_KH}, 13")
    e(f"v_add_u32 v{vKa[0]}, s3, v63")
    for s in range(1, 4):
        e(f"v_xor_b32 v{vKa[s]}, {s<<6}, v{vKa[0]}")
    e("v_lshrrev_b32 v63, 1, v3")
    e("v_lshlrev_b32 v63, 10, v63")
    e(f"v_and_b32 v{vOst}, 1, v3")
    e(f"v_lshl_add_u32 v63, v{vOst}, 9, v63")
    e(f"v_lshl_add_u32 v{vOst}, v2, 4, v63")
    e(f"s_mul_i32 s3, s{S_W}, 12288")
    e(f"s_add_u32 s3, s3, {QIMG}")
    e("v_lshlrev_b32 v63, 4, v1")
    e(f"v_add_u32 v{vCw}, s3, v63")
    e(f"s_xor_b32 s4, s{S_W}, 2")
    e("s_mul_i32 s3, s4, 12288")
    e(f"s_add_u32 s3, s3, {QIMG}")
    e(f"v_add_u32 v{vCr}, s3, v63")
    e(f"s_lshl_b32 s3, s{S_W}, 11")
    e(f"s_add_u32 s3, s3, {MLB}")
    e(f"v_add_u32 v{vML}, s3, v63")
    e(f"v_mov_b32 v{vCC}, {f32hex(CEXP)}")
    e(f"s_mul_i32 s3, s{S_B}, 6")
    e(f"s_mul_i32 s4, s{S_QH}, 3")
    e("s_add_u32 s3, s3, s4")
    e(f"s_lshl_b32 s5, s{S_H0}, 3")
    e(f"s_lshl_b32 s6, s{S_KH}, 2")
    e("s_add_u32 s5, s5, s6")
    e("s_lshl_b32 s5, s5, 10")
    e(f"s_mul_i32 s6, s{S_BR}, {O_BRANCH}")
    e("s_add_u32 s5, s5, s6")
    for qt in range(3):
        e(f"s_add_u32 s4, s3, {qt}")
        e("s_lshr_b32 s6, s4, 1")
        e("s_lshl_b32 s6, s6, 18")
        e("s_and_b32 s4, s4, 1")
        e("s_lshl_b32 s4, s4, 8")
        e("s_add_u32 s4, s4, s6")
        e(f"s_add_u32 s{S_OST+qt}, s4, s5")

    FA = [96, 140]

    def q_reads(s):
        fs = FA[s & 1]
        g = []
        xb = ((s >> 1) & 1) * 12288
        for qt in range(3):
            g.append([f"ds_read_b128 {ar(fs+32+4*qt, 4)}, v{vXa[s&1]} offset:{xb + qt*2048}"])
        wb = (s & 3) * 16384
        for T in range(8):
            g.append([f"ds_read_b64_tr_b16 {ar(fs+4*T, 2)}, v{vTa[T]} offset:{wb}"])
            g.append([f"ds_read_b64_tr_b16 {ar(fs+4*T+2, 2)}, v{vTa[T]} offset:{wb+2048}"])
        return g

    e.wait(["x0", "w0"])
    e("s_barrier")
    st("w0")
    flat(q_reads(0))
    for s in range(20):
        need = []
        if s + 1 < 20:
            need = [f"w{s+1}", f"x{(s+1)>>1}"]
        e.wait(need if need else None, lgkm=0)
        e("s_barrier")
        fs = FA[s & 1]
        mm = []
        for T in range(8):
            for qt in range(3):
                d = vr(SB + (T * 3 + qt) * 4, 4)
                mm.append(mf16(d, ar(fs + 4 * T, 4), ar(fs + 32 + 4 * qt, 4), d if s else "0"))
        rd = q_reads(s + 1) if s + 1 < 20 else []
        dm = []
        if (s & 1) and (s >> 1) + 2 < 10:
            dm += dma_x((s >> 1) + 2)
        if s + 4 < 20:
            dm += dma_w(s + 4)
            dm += dma_kv(s >> 2, which=(s & 3,))
        elif s < 19:
            dm += dma_kv(s - 12)
        fill = []
        ri = di = 0
        for i in range(24):
            grp = []
            if ri < len(rd):
                grp += rd[ri]; ri += 1
            if i % 3 == 1 and di < len(dm):
                grp += dm[di]; di += 1
            fill.append(grp)
        assert ri == len(rd) and di == len(dm), (s, ri, di, len(dm))
        weave(e, mm, fill)
    st("qproj")
    e("v_lshrrev_b32 v63, 1, v3")
    e("v_xor_b32 v63, v63, v2")
    e("v_lshlrev_b32 v63, 4, v63")
    e("v_lshl_add_u32 v63, v2, 8, v63")
    e("v_and_b32 v59, 1, v3")
    e("v_lshl_add_u32 v63, v59, 3, v63")
    e(f"s_mul_i32 s3, s{S_KH}, 24576")
    e(f"s_mul_i32 s4, s{S_QH}, {48*256}")
    e(f"s_add_u32 s4, s4, {QIMG}")
    e("s_add_u32 s3, s3, s4")
    e("v_add_u32 v63, s3, v63")
    e("v_xor_b32 v59, v3, v2")
    e("v_lshlrev_b32 v59, 4, v59")
    e("v_lshl_add_u32 v59, v2, 8, v59")
    e("v_add_u32 v59, s4, v59")
    for T in range(8):
        if T:
            e(f"v_xor_b32 v58, {T<<5}, v63")
        for qt in range(3):
            a = SB + (T * 3 + qt) * 4
            e(f"v_cvt_pk_bf16_f32 v{a}, v{a}, v{a+1}")
            e(f"v_cvt_pk_bf16_f32 v{a+1}, v{a+2}, v{a+3}")
            e(f"ds_write_b64 v{58 if T else 63}, {vr(a,2)} offset:{qt*4096}")
    e("v_lshl_add_u32 v58, v3, 2, v60")
    e("v_lshlrev_b32 v58, 8, v58")
    e("v_lshl_add_u32 v58, v62, 5, v58")
    e("v_lshl_add_u32 v58, v61, 3, v58")
    e(f"s_lshl_b32 s3, s{S_KH}, 13")
    e(f"v_add_u32 v58, s3, v58")
    e(f"s_lshl_b32 s3, s{S_KH}, 7")
    e(f"v_xor_b32 v{vTa[0]}, s3, v58")
    for T in range(1, 8):
        e(f"v_xor_b32 v{vTa[T]}, {T<<5}, v{vTa[0]}")
    e("s_waitcnt lgkmcnt(0)")
    e("s_barrier")
    for s in range(4):
        if s:
            e(f"v_xor_b32 v58, {s<<6}, v59")
        for j in range(2):
            for qt in range(3):
                e(f"ds_read_b128 {ar(j*48 + (s*3+qt)*4, 4)}, v{58 if s else 59} offset:{j*24576 + qt*4096}")
    st("qx")

    FK = 96
    for u in range(2):
        QB = 48 * u
        for sg in range(8):
            n = 16 * u + sg
            if sg == 4:
                for s in range(4):
                    e(f"v_add_u32 v{vKa[s]}, 0x10000, v{vKa[s]}")
            e.wait(f"kv{n}", lgkm=0)
            e("s_barrier")
            ob = (sg & 3) * 16384
            for t in range(2):
                for s in range(4):
                    e(f"ds_read_b128 {ar(FK + (t*4+s)*4, 4)}, v{vKa[s]} offset:{ob + t*4096}")
            if n + 7 < 32:
                flat(dma_kv(n + 7))
            for t in range(2):
                for s in range(4):
                    e(f"s_waitcnt lgkmcnt({7 - (t*4+s)})")
                    for qt in range(3):
                        d = vr(SB + (sg * 3 + qt) * 8 + t * 4, 4)
                        e(mf16(d, ar(FK + (t*4+s)*4, 4), ar(QB + (s*3+qt)*4, 4), d if s else "0"))
        for s in range(4):
            e(f"v_add_u32 v{vKa[s]}, 0xffff0000, v{vKa[s]}")
        st(f"qk{u}")
        e("s_nop 4")
        vals = [[SB + (sg * 3 + qt) * 8 + i for sg in range(8) for i in range(8)] for qt in range(3)]
        for qt in range(3):
            v = vals[qt]
            e(f"v_max3_f32 v{vM[qt]}, v{v[0]}, v{v[1]}, v{v[2]}")
        for k in range(3, 63, 2):
            for qt in range(3):
                v = vals[qt]
                e(f"v_max3_f32 v{vM[qt]}, v{vM[qt]}, v{v[k]}, v{v[k+1]}")
        for qt in range(3):
            e(f"v_max_f32 v{vM[qt]}, v{vM[qt]}, v{vals[qt][63]}")
        for op in ("v_permlane32_swap_b32", "v_permlane16_swap_b32"):
            for qt in range(3):
                e(f"v_mov_b32 v{vT[qt]}, v{vM[qt]}")
            e("s_nop 1")
            for qt in range(3):
                e(f"{op} v{vT[qt]}, v{vM[qt]}")
            e("s_nop 1")
            for qt in range(3):
                e(f"v_max_f32 v{vM[qt]}, v{vM[qt]}, v{vT[qt]}")
        for qt in range(3):
            e(f"v_mul_f32 v{vMC[qt]}, {f32hex(-CEXP)}, v{vM[qt]}")
            e(f"v_mov_b32 v{vL[qt]}, 0")
            e(f"v_mov_b32 v{vL[qt]+1}, 0")
        def g_fma(i):
            qt = i % 3
            for k in range(0, 8, 2):
                a = SB + i * 8 + k
                e(f"v_pk_fma_f32 {vr(a,2)}, {vr(a,2)}, {vr(vCC,2)}, {vr(vMC[qt],2)} op_sel_hi:[1,0,0]")
        def g_exp(i):
            for k in range(8):
                a = SB + i * 8 + k
                e(f"v_exp_f32 v{a}, v{a}")
        def g_fin(i):
            qt = i % 3
            for k in range(0, 8, 2):
                a = SB + i * 8 + k
                e(f"v_pk_add_f32 {vr(vL[qt],2)}, {vr(vL[qt],2)}, {vr(a,2)}")
                e(f"v_cvt_pk_bf16_f32 v{SB + i*4 + k//2}, v{a}, v{a+1}")
        g_fma(0)
        for i in range(24):
            if i + 1 < 24:
                g_fma(i + 1)
            g_exp(i)
            if i:
                g_fin(i - 1)
        e("s_nop 0")
        g_fin(23)
        for qt in range(3):
            e(f"v_add_f32 v{vL[qt]}, v{vL[qt]}, v{vL[qt]+1}")
        for op in ("v_permlane32_swap_b32", "v_permlane16_swap_b32"):
            for qt in range(3):
                e(f"v_mov_b32 v{vT[qt]}, v{vL[qt]}")
            e("s_nop 1")
            for qt in range(3):
                e(f"{op} v{vT[qt]}, v{vL[qt]}")
            e("s_nop 1")
            for qt in range(3):
                e(f"v_add_f32 v{vL[qt]}, v{vL[qt]}, v{vT[qt]}")
        for qt in range(3):
            e(f"v_mov_b32 v{vE+qt}, v{vM[qt]}")
            e(f"v_mov_b32 v{vE+3+qt}, v{vL[qt]}")
        e(f"ds_write_b128 v{vML}, {vr(vE,4)}")
        e(f"ds_write_b64 v{vML}, {vr(vE+4,2)} offset:1024")
        st(f"sm{u}")
        for sg in range(8):
            n = 16 * u + 8 + sg
            if sg == 4:
                for T in range(8):
                    e(f"v_add_u32 v{vTa[T]}, 0x10000, v{vTa[T]}")
            e.wait(f"kv{n}", lgkm=0)
            e("s_barrier")
            ob = (sg & 3) * 16384
            if sg == 0:
                e(f"v_xor_b32 v58, 4096, v{vML}")
                e(f"ds_read_b128 {vr(vE,4)}, v58")
                e(f"ds_read_b64 {vr(vE+4,2)}, v58 offset:1024")
            for T in range(8):
                e(f"ds_read_b64_tr_b16 {ar(FK + 4*T, 2)}, v{vTa[T]} offset:{ob}")
                e(f"ds_read_b64_tr_b16 {ar(FK + 4*T + 2, 2)}, v{vTa[T]} offset:{ob + 4096}")
            if n + 7 < 32:
                flat(dma_kv(n + 7))
            for T in range(8):
                e(f"s_waitcnt lgkmcnt({14 - 2*T})")
                for qt in range(3):
                    d = vr(OB + (T * 3 + qt) * 4, 4)
                    e(mf16(d, ar(FK + 4*T, 4), vr(SB + (sg*3+qt)*4, 4), d if sg else "0"))
            if sg == 0:
                for qt in range(3):
                    e(f"v_max_f32 v{vT[qt]}, v{vM[qt]}, v{vE+qt}")
                for qt in range(3):
                    e(f"v_sub_f32 v{vM[qt]}, v{vM[qt]}, v{vT[qt]}")
                    e(f"v_sub_f32 v{vE+qt}, v{vE+qt}, v{vT[qt]}")
                for qt in range(3):
                    e(f"v_mul_f32 v{vM[qt]}, v{vCC}, v{vM[qt]}")
                    e(f"v_mul_f32 v{vE+qt}, v{vCC}, v{vE+qt}")
                for qt in range(3):
                    e(f"v_exp_f32 v{vM[qt]}, v{vM[qt]}")
                    e(f"v_exp_f32 v{vE+qt}, v{vE+qt}")
                e("s_nop 0")
                for qt in range(3):
                    e(f"v_mul_f32 v{vL[qt]}, v{vL[qt]}, v{vM[qt]}")
                for qt in range(3):
                    e(f"v_fma_f32 v{vL[qt]}, v{vE+3+qt}, v{vE+qt}, v{vL[qt]}")
                for qt in range(3):
                    e(f"v_rcp_f32 v{vL[qt]}, v{vL[qt]}")
                e("s_nop 0")
                for qt in range(3):
                    e(f"v_mul_f32 v{vF[qt]}, v{vL[qt]}, v{vM[qt]}")
        for T in range(8):
            e(f"v_add_u32 v{vTa[T]}, 0xffff0000, v{vTa[T]}")
        st(f"pv{u}")
        for j in list(range(4, 8)):
            for qt in range(3):
                a = OB + (j * 3 + qt) * 4
                for k in (0, 2):
                    e(f"v_pk_mul_f32 {vr(a+k,2)}, {vr(a+k,2)}, {vr(vF[qt],2)} op_sel_hi:[1,0]")
        e("s_barrier")
        for j in range(4, 8):
            for qt in range(3):
                a = OB + (j * 3 + qt) * 4
                e(f"ds_write_b128 v{vCw}, {vr(a,4)} offset:{((j-4)*3+qt)*1024}")
        e("s_waitcnt lgkmcnt(0)")
        e("s_barrier")
        RB = SB
        for i in range(12):
            e(f"ds_read_b128 {vr(RB + 4*i, 4)}, v{vCr} offset:{i*1024}")
        PB = 112
        for uu in range(2):
            for qt in range(3):
                e(f"s_waitcnt lgkmcnt({11 - ((2*uu+1)*3 + qt)})")
                for jj in range(2):
                    j = 2 * uu + jj
                    a = OB + (j * 3 + qt) * 4
                    rb = RB + (j * 3 + qt) * 4
                    for k in (0, 2):
                        e(f"v_pk_fma_f32 {vr(a+k,2)}, {vr(a+k,2)}, {vr(vF[qt],2)}, {vr(rb+k,2)} op_sel_hi:[1,0,1]")
                p = PB + (uu * 3 + qt) * 4
                for jj in range(2):
                    a = OB + ((2 * uu + jj) * 3 + qt) * 4
                    e(f"v_cvt_pk_bf16_f32 v{p+2*jj}, v{a}, v{a+1}")
                    e(f"v_cvt_pk_bf16_f32 v{p+2*jj+1}, v{a+2}, v{a+3}")
                sc = " sc1" if opt.o_sc1 else ""
                e.vm(f"buffer_store_dwordx4 {vr(p,4)}, v{vOst}, s[{sO}:{sO+3}], s{S_OST+qt} offen offset:{uu*2048}{sc}", "ost")
        if u == 0:
            for qt in range(3):
                e(f"s_add_u32 s{S_OST+qt}, s{S_OST+qt}, 8192")
        st(f"end{u}")
    if opt.stamps:
        e("s_waitcnt vmcnt(0)")
        st("drain")
    st.dump(sO, S_W, 0)
    e.label("L_k1_end")
    e("s_endpgm")
    return st.names


def gen_k2(e, opt):
    sWo, sO, sOut = 8, 12, 16
    S_W, S_BR, S_MI, S_NI = 28, 29, 30, 31
    S_WOFF, S_O0, S_O1, S_M0, S_T, S_T1, S_T2 = 32, 33, 34, 35, 36, 37, 38
    vD = [4, 5, 6, 7]
    vB = 8
    vA = [9, 10]
    FA = [16, 32]
    ACC = 64
    st = Stamper(e, opt.stamps)
    e.label("k2_kernel")
    e("s_cmp_ge_u32 s2, 240")
    e("s_cbranch_scc1 L_k2_end")
    st("start")
    e("s_and_b32 s3, s2, 7")
    e(f"s_lshr_b32 s{S_BR}, s3, 2")
    e(f"s_mul_i32 s4, s{S_BR}, 40")
    e("s_add_u32 s4, s0, s4")
    e("s_addc_u32 s5, s1, 0")
    e(f"s_load_dwordx2 s[{sWo}:{sWo+1}], s[4:5], 32")
    e(f"s_load_dwordx2 s[{sO}:{sO+1}], s[0:1], 96")
    e(f"s_load_dwordx2 s[{sOut}:{sOut+1}], s[0:1], 80")
    e("v_lshrrev_b32 v2, 6, v0")
    e("v_and_b32 v1, 63, v0")
    e(f"v_readfirstlane_b32 s{S_W}, v2")
    e("s_lshr_b32 s6, s2, 3")
    e("s_mul_i32 s7, s6, 43")
    e("s_lshr_b32 s7, s7, 8")
    e("s_mul_i32 s4, s7, 6")
    e("s_sub_u32 s6, s6, s4")
    e("s_bfe_u32 s4, s3, 0x10001")
    e("s_mul_i32 s4, s4, 6")
    e(f"s_add_u32 s{S_MI}, s4, s6")
    e("s_and_b32 s4, s3, 1")
    e("s_mul_i32 s4, s4, 5")
    e(f"s_add_u32 s{S_NI}, s4, s7")
    e(f"s_mul_i32 s{S_WOFF}, s{S_W}, {1024*1280}")
    e(f"s_lshl_b32 s4, s{S_NI}, 7")
    e(f"s_add_u32 s{S_WOFF}, s{S_WOFF}, s4")
    e(f"s_mul_i32 s{S_O0}, s{S_BR}, {O_BRANCH}")
    e(f"s_lshl_b32 s4, s{S_MI}, 19")
    e(f"s_add_u32 s{S_O0}, s{S_O0}, s4")
    e(f"s_lshl_b32 s4, s{S_W}, 16")
    e(f"s_add_u32 s{S_O0}, s{S_O0}, s4")
    e(f"s_add_u32 s{S_O1}, s{S_O0}, 262144")
    e(f"s_lshl_b32 s{S_M0}, s{S_W}, 15")
    e("v_lshrrev_b32 v60, 3, v1")
    e("v_mul_u32_u24 v60, 1280, v60")
    e("v_and_b32 v61, 7, v1")
    e("v_bfe_u32 v62, v1, 4, 1")
    e("v_lshlrev_b32 v62, 2, v62")
    e("v_xor_b32 v61, v61, v62")
    e(f"v_lshl_add_u32 v{vD[0]}, v61, 4, v60")
    for j in range(1, 4):
        e(f"v_add_u32 v{vD[j]}, {j*(10240-1024)}, v{vD[0]}")
    e(f"v_lshlrev_b32 v{vB}, 4, v1")
    e("s_waitcnt lgkmcnt(0)")
    srd(e, sWo, 5242880)
    srd(e, sO, (DBG_OFF + (1 << 20)) if opt.stamps else O_BYTES)
    srd(e, sOut, 8 * 96 * 1280 * 2)

    def loads(p):
        g = []
        pre = [f"s_add_u32 m0, s{S_M0}, {(p&7)*4096}", f"s_add_u32 s{S_T}, s{S_WOFF}, {p*32*1280}"]
        for j in range(4):
            ins = f"buffer_load_dwordx4 v{vD[j]}, s[{sWo}:{sWo+3}], s{S_T} offen offset:{j*1024} lds"
            g.append((pre if j == 0 else []) + [lambda ins=ins, p=p: e.vm(ins, f"d{p}")])
        pre = [f"s_add_u32 s{S_T1}, s{S_O0}, {p*2048}", f"s_add_u32 s{S_T2}, s{S_O1}, {p*2048}"]
        sc = " sc1" if opt.o_sc1 else ""
        for gm in range(2):
            for rho in range(2):
                dst = ar((p & 7) * 16 + (gm * 2 + rho) * 4, 4)
                ins = f"buffer_load_dwordx4 {dst}, v{vB}, s[{sO}:{sO+3}], s{S_T2 if rho else S_T1} offen offset:{gm*1024}"
                g.append((pre if gm + rho == 0 else []) + [lambda ins=ins, p=p: e.vm(ins, f"l{p}")])
        return g

    def flat(groups):
        for g in groups:
            for f in g:
                emit1(e, f)

    for p in range(7):
        flat(loads(p))
    e("v_bfe_u32 v60, v1, 2, 2")
    e("v_lshrrev_b32 v61, 5, v1")
    e("v_lshl_add_u32 v61, v61, 2, v60")
    e("v_lshlrev_b32 v61, 7, v61")
    e("v_lshrrev_b32 v60, 1, v60")
    e("v_lshl_add_u32 v61, v60, 6, v61")
    e("v_bfe_u32 v60, v1, 4, 1")
    e("v_lshl_add_u32 v61, v60, 5, v61")
    e("v_and_b32 v60, 3, v1")
    e("v_lshl_add_u32 v61, v60, 3, v61")
    e(f"v_add_u32 v{vA[0]}, s{S_M0}, v61")
    e(f"v_xor_b32 v{vA[1]}, 64, v{vA[0]}")

    def a_reads(p):
        g = []
        fs = FA[p & 1]
        for gm in range(2):
            for j in range(2):
                d = fs + (gm * 2 + j) * 4
                o = (p & 7) * 4096 + gm * 1024
                g.append([f"ds_read_b64_tr_b16 {vr(d,2)}, v{vA[j]} offset:{o}"])
                g.append([f"ds_read_b64_tr_b16 {vr(d+2,2)}, v{vA[j]} offset:{o+2048}"])
        return g

    e.wait("d0")
    st("d0")
    flat(a_reads(0))
    for p in range(32):
        e.wait(f"d{p+1}" if p + 1 < 32 else f"l{p}", lgkm=0)
        fs = FA[p & 1]
        mm = []
        for gm in range(2):
            for j in range(2):
                for rho in range(2):
                    d = vr(ACC + (j * 2 + rho) * 16, 16)
                    b = ar((p & 7) * 16 + (gm * 2 + rho) * 4, 4)
                    mm.append(f"v_mfma_f32_32x32x16_bf16 {d}, {vr(fs + (gm*2+j)*4, 4)}, {b}, {d if (p or gm) else '0'}")
        rd = a_reads(p + 1) if p + 1 < 32 else []
        ld = loads(p + 7) if p + 7 < 32 else []
        fill = []
        for i in range(8):
            grp = []
            if rd:
                grp += rd[i]
            if ld:
                grp += ld[i]
            fill.append(grp)
        weave(e, mm, fill)
    st("mma")
    e("v_and_b32 v60, 31, v1")
    e("v_lshrrev_b32 v61, 5, v1")
    e("v_and_b32 v62, 15, v1")
    e("v_xor_b32 v61, v61, v62")
    e("v_lshlrev_b32 v61, 4, v61")
    e("v_lshl_add_u32 v61, v60, 8, v61")
    e(f"v_add_u32 v61, s{S_M0}, v61")
    e("s_nop 7")
    for j in range(2):
        for rr in range(4):
            ch = 8 * j + 2 * rr
            e(f"v_xor_b32 v62, {ch<<4}, v61")
            for rho in range(2):
                a = ACC + (j * 2 + rho) * 16 + rr * 4
                e(f"ds_write_b128 v62, {vr(a,4)} offset:{rho*8192}")
    e("v_lshrrev_b32 v60, 3, v1")
    e("v_and_b32 v62, 7, v1")
    e("v_lshlrev_b32 v62, 1, v62")
    e("v_xor_b32 v63, v62, v60")
    e("v_lshlrev_b32 v63, 4, v63")
    e("v_lshl_add_u32 v63, v60, 8, v63")
    e(f"s_lshl_b32 s3, s{S_W}, 12")
    e("v_add_u32 v63, s3, v63")
    e("v_xor_b32 v59, 16, v63")
    e("v_xor_b32 v58, 128, v63")
    e("v_xor_b32 v57, 128, v59")
    e("v_mul_u32_u24 v56, 2560, v60")
    e("v_lshl_add_u32 v56, v62, 3, v56")
    e(f"s_lshl_b32 s3, s{S_MI}, 6")
    e(f"s_lshl_b32 s4, s{S_W}, 4")
    e("s_add_u32 s3, s3, s4")
    e("s_mul_i32 s3, s3, 2560")
    e(f"s_mul_i32 s4, s{S_BR}, 1280")
    e("s_add_u32 s3, s3, s4")
    e(f"s_lshl_b32 s4, s{S_NI}, 7")
    e("s_add_u32 s3, s3, s4")
    e("s_add_u32 s4, s3, 20480")
    e("s_waitcnt lgkmcnt(0)")
    e("s_barrier")
    for h in range(2):
        for ck in range(2):
            va = [[63, 59], [58, 57]][h][ck]
            for w in range(4):
                d = 64 + ((h * 2 + ck) * 4 + w) * 4
                if w < 2:
                    e(f"ds_read_b128 {vr(d,4)}, v{va} offset:{w*32768 + h*2048}")
                else:
                    if w == 2:
                        e(f"v_add_u32 v{va}, 0x10000, v{va}")
                    e(f"ds_read_b128 {vr(d,4)}, v{va} offset:{(w-2)*32768 + h*2048}")
    for h in range(2):
        e(f"s_waitcnt lgkmcnt({8 - 8*h})")
        for ck in range(2):
            d = 64 + (h * 2 + ck) * 16
            for k in (0, 2):
                e(f"v_pk_add_f32 {vr(d+k,2)}, {vr(d+k,2)}, {vr(d+4+k,2)}")
                e(f"v_pk_add_f32 {vr(d+8+k,2)}, {vr(d+8+k,2)}, {vr(d+12+k,2)}")
            for k in (0, 2):
                e(f"v_pk_add_f32 {vr(d+k,2)}, {vr(d+k,2)}, {vr(d+8+k,2)}")
            for k in (0, 2):
                e(f"v_cvt_pk_bf16_f32 v{48 + h*4 + ck*2 + k//2}, v{d+k}, v{d+k+1}")
        e(f"buffer_store_dwordx4 {vr(48+h*4,4)}, v56, s[{sOut}:{sOut+3}], s{3+h} offen")
    if opt.stamps:
        e("s_waitcnt vmcnt(0)")
        st("end")
    st.dump(sO, S_W, 1 << 19)
    e.label("L_k2_end")
    e("s_endpgm")
    return st.names


def desc(name, vg, acc):
    return f""".amdhsa_kernel {name}
  .amdhsa_next_free_vgpr {vg}
  .amdhsa_next_free_sgpr 102
  .amdhsa_accum_offset {acc}
  .amdhsa_group_segment_fixed_size 0
  .amdhsa_kernarg_size 104
  .amdhsa_user_sgpr_count 2
  .amdhsa_user_sgpr_kernarg_segment_ptr 1
  .amdhsa_system_sgpr_workgroup_id_x 1
.end_amdhsa_kernel
"""


def build(opt):
    head = [
        "; fused q-proj + attention (k1), output projection (k2); generated by gen/gen1.py",
        "; @launch kernel=k1_kernel grid=(256,1,1) block=(256,1,1) lds=163840",
        "; @launch kernel=k2_kernel grid=(240,1,1) block=(256,1,1) lds=131072",
        '.amdgcn_target "amdgcn-amd-amdhsa--gfx950"',
        ".text",
    ]
    out = "\n".join(head) + "\n"
    names = {}
    for nm, fn in (("k1_kernel", gen_k1), ("k2_kernel", gen_k2)):
        e = Em()
        e.raw(f".globl {nm}")
        e.raw(".p2align 8")
        e.raw(f".type {nm},@function")
        names[nm] = fn(e, opt)
        out += e.text()
    out += '.section .rodata,"a"\n.p2align 6\n'
    out += desc("k1_kernel", 256 + 184, 256)
    out += ".p2align 6\n"
    out += desc("k2_kernel", 128 + 128, 128)
    return out, names


if __name__ == "__main__":
    opt = Opt()
    path = sys.argv[1]
    for a in sys.argv[2:]:
        k, v = a.split("=")
        setattr(opt, k, type(getattr(opt, k))(int(v)))
    txt, names = build(opt)
    open(path, "w").write(txt)
    if opt.stamps:
        import json
        json.dump(names, open(path + ".names", "w"))
    print("wrote", path, len(txt))
```
